```python
import torch

def _softmax(x, axis=-1):
    return torch.softmax(x, dim=axis)
def _gelu(x):
    return torch.nn.functional.gelu(x, approximate="tanh")
def _silu(x):
    return torch.nn.functional.silu(x)
def _sigmoid(x):
    return torch.sigmoid(x)
def _layernorm(x, axis=-1, eps=1e-5):
    m = x.mean(dim=axis, keepdim=True)
    v = x.var(dim=axis, keepdim=True, unbiased=False)
    return (x - m) / torch.sqrt(v + eps)
def _scatter_add(tgt, idx, src, axis=0):
    return tgt.clone().index_add_(axis, idx, src)
def _segment_sum(src, seg, n):
    out = torch.zeros((n,) + src.shape[1:], dtype=src.dtype)
    return out.index_add_(0, seg, src)
def _pad(x, pw):
    flat = tuple(v for pair in reversed(pw) for v in pair)
    return torch.nn.functional.pad(x, flat)

kernel_name = 'concat_heads__mha_block_cached__gqa_block_cached__near_ridge'

def setup_inputs():

    _w = (lambda a: (lambda t: t.to(torch.bfloat16) if t.is_floating_point() else t)(torch.as_tensor(a)))
    def _A_setup():
        B, Sq, D = 8, 128, 448
        H, Sk, Dh = 16, 512, 256
        return {
            "x": _w((lambda *s: torch.randn(*s, dtype=torch.bfloat16) * 0.8)(B, Sq, D)),
            "k_cache": _w((lambda *s: torch.randn(*s, dtype=torch.bfloat16) * 0.8)(B, H, Sk, Dh)),
            "v_cache": _w((lambda *s: torch.randn(*s, dtype=torch.bfloat16) * 0.05)(B, H, Sk, Dh)),
            "wq": _w((lambda *s: torch.randn(*s, dtype=torch.bfloat16) * 0.8)(D, H * Dh) * (D ** -0.5)),
            "wo": _w((lambda *s: torch.randn(*s, dtype=torch.bfloat16) * 0.05)(H * Dh, D) * ((H * Dh) ** -0.5)),
        }
    _A_in = _A_setup()

    def _B_setup():
        B, Sq, D = 8, 128, 448
        Hq, Hkv, Sk, Dh = 16, 16, 512, 256
        assert Hq % Hkv == 0, (Hq, Hkv)
        return {
            "x": _w((lambda *s: torch.randn(*s, dtype=torch.bfloat16) * 0.8)(B, Sq, D)),
            "k_cache": _w((lambda *s: torch.randn(*s, dtype=torch.bfloat16) * 0.8)(B, Hkv, Sk, Dh)),
            "v_cache": _w((lambda *s: torch.randn(*s, dtype=torch.bfloat16) * 0.05)(B, Hkv, Sk, Dh)),
            "wq": _w((lambda *s: torch.randn(*s, dtype=torch.bfloat16) * 0.8)(D, Hq * Dh) * (D ** -0.5)),
            "wo": _w((lambda *s: torch.randn(*s, dtype=torch.bfloat16) * 0.05)(Hq * Dh, D) * ((Hq * Dh) ** -0.5)),
        }
    _B_in = _B_setup()

    return {
        "A_x": _A_in["x"],
        "A_k_cache": _A_in["k_cache"],
        "A_v_cache": _A_in["v_cache"],
        "A_wq": _A_in["wq"],
        "A_wo": _A_in["wo"],
        "B_x": _B_in["x"],
        "B_k_cache": _B_in["k_cache"],
        "B_v_cache": _B_in["v_cache"],
        "B_wq": _B_in["wq"],
        "B_wo": _B_in["wo"],
    }

def reference(A_x, A_k_cache, A_v_cache, A_wq, A_wo, B_x, B_k_cache, B_v_cache, B_wq, B_wo):
    def _A_ref(x, k_cache, v_cache, wq, wo):
        B, Sq, D = x.shape
        H, Dh = 16, 256
        q = (lambda x, *d: x.permute(*d))((x @ wq).reshape(B, Sq, H, Dh), 0, 2, 1, 3)
        scores = torch.einsum("bhqd,bhkd->bhqk", q, k_cache) * (Dh ** -0.5)
        p = _softmax(scores, axis=-1)
        o = torch.einsum("bhqk,bhkd->bhqd", p, v_cache)
        return (lambda x, *d: x.permute(*d))(o, 0, 2, 1, 3).reshape(B, Sq, H * Dh) @ wo

    def _B_ref(x, k_cache, v_cache, wq, wo):
        B, Sq, D = x.shape
        Hq, Dh = 16, 256
        Hkv = k_cache.shape[1]
        rep = Hq // Hkv
        q = (lambda x, *d: x.permute(*d))((x @ wq).reshape(B, Sq, Hq, Dh), 0, 2, 1, 3)
        k = (lambda x, n, axis: torch.repeat_interleave(x, n, dim=axis))(k_cache, rep, axis=1)
        v = (lambda x, n, axis: torch.repeat_interleave(x, n, dim=axis))(v_cache, rep, axis=1)
        scores = torch.einsum("bhqd,bhkd->bhqk", q, k) * (Dh ** -0.5)
        p = _softmax(scores, axis=-1)
        o = torch.einsum("bhqk,bhkd->bhqd", p, v)
        return (lambda x, *d: x.permute(*d))(o, 0, 2, 1, 3).reshape(B, Sq, Hq * Dh) @ wo

    a = _A_ref(A_x, A_k_cache, A_v_cache, A_wq, A_wo)
    b = _B_ref(B_x, B_k_cache, B_v_cache, B_wq, B_wo)
    return torch.concatenate([a, b], axis=-1)
```

```python
import sys, struct, math
NAME = "concat_heads__mha_block_cached__gqa_block_cached__near_ridge"

def f2u(x):
    return struct.unpack("<I", struct.pack("<f", x))[0]

class Em:
    def __init__(s):
        s.L = []; s.n = 0
        s.vw = {}; s.tw = {}; s.mw = {}; s.mc = {}; s.sr = {}
        s.lds = []; s.lid = 0
        s.nops = 0
    def raw(s, t): s.L.append(t)
    def ins(s, t): s.L.append("  " + t); s.n += 1
    def nop(s, k):
        s.nops += k
        while k > 0:
            c = min(k, 16); s.L.append(f"  s_nop {c-1}"); s.n += c; k -= c
    def _need(s, tab, regs, dist):
        p = 0
        for r in regs:
            if r in tab:
                last = tab[r] if not isinstance(tab[r], tuple) else tab[r][0]
                p = max(p, dist - (s.n - last - 1))
        return p
    def valu(s, t, w=(), r=(), trans=False, perm=False):
        p = max(s._need(s.mw, list(w) + list(r), 12), s._need(s.mc, w, 7), s._need(s.sr, w, 2), s._need(s.tw, r, 1))
        if perm: p = max(p, s._need(s.vw, r, 2))
        if p > 0: s.nop(p)
        for x in w:
            s.vw[x] = s.n
            if trans: s.tw[x] = s.n
            else: s.tw.pop(x, None)
        s.ins(t)
    def mfma(s, d, a, b, cz):
        A = range(a, a + 4); B = range(b, b + 4); D = range(d, d + 16)
        p = max(s._need(s.vw, list(A) + list(B), 2), s._need(s.mw, list(A) + list(B), 12), s._need(s.sr, D, 2))
        if not cz:
            p = max(p, s._need(s.vw, D, 2))
            for x in D:
                if x in s.mw: assert s.mw[x][1] == d or s.n - s.mw[x][0] > 12
        if p > 0: s.nop(p)
        for x in D:
            s.mw[x] = (s.n, d)
            if not cz: s.mc[x] = s.n
        c = "0" if cz else f"v[{d}:{d+15}]"
        s.ins(f"v_mfma_f32_32x32x16_bf16 v[{d}:{d+15}], v[{a}:{a+3}], v[{b}:{b+3}], {c}")
    def ds(s, t, w=(), r=()):
        p = max(s._need(s.mw, list(w) + list(r), 12), s._need(s.sr, w, 2))
        if p > 0: s.nop(p)
        s.ins(t); s.lid += 1; s.lds.append(s.lid); return s.lid
    def wait(s, i):
        if i in s.lds:
            k = s.lds.index(i); n = len(s.lds) - 1 - k
            n = min(n, 15)
            s.ins(f"s_waitcnt lgkmcnt({n})")
            s.lds = s.lds[len(s.lds) - n:] if n else []
    def store(s, t, data, r=()):
        p = s._need(s.mw, list(data) + list(r), 12)
        if p > 0: s.nop(p)
        for x in data: s.sr[x] = s.n
        s.ins(t)

ACC = 0; QF = 128; S0 = 192; AF = 224
bK, bV, ta0, ta1, rm, rl, ralpha, rnb, x0, x1, vC, vF, bO, vST, ta2, ta3 = range(240, 256)
bX = ralpha; bW = rnb
SLOT0 = 16384; NSLOT = 9
PRODOFF = 1024

class Stage:
    def __init__(s, kind, a, b=0):
        s.kind = kind; s.a = a; s.b = b; s.slot = None; s.ci = None; s.ii = None; s.need = 0
    def __repr__(s): return f"{s.kind}{s.a}.{s.b}"

def build_stages(cfg):
    X = [Stage("X", g) for g in range(7)]
    W = [[Stage("W", g, h) for h in range(2)] for g in range(7)]
    K = [Stage("K", i) for i in range(16)]
    V = [Stage("V", i) for i in range(16)]
    O = [[Stage("O", j, h) for h in range(2)] for j in range(7)]
    WL = []
    for g in range(7): WL += [X[g], W[g][0], W[g][1]]
    KV = [K[0]]
    for i in range(15): KV += [K[i + 1], V[i]]
    KV += [V[15]]
    OL = []
    for j in range(7): OL += O[j]
    cons = WL + KV + OL
    for i, s in enumerate(cons): s.ci = i
    iss = []; kv = list(KV); ol = list(OL)
    for i, s in enumerate(WL):
        iss.append(s)
        for _ in range(cfg["ins"].get(i, 0)): iss.append(kv.pop(0))
    while kv:
        left = len(kv)
        for _ in range(cfg["oins"].get(left, 0)): iss.append(ol.pop(0))
        iss.append(kv.pop(0))
    iss += ol
    occ = [None] * NSLOT
    for i, s in enumerate(iss):
        s.ii = i
        k = min(range(NSLOT), key=lambda j: -1 if occ[j] is None else occ[j].ci)
        if occ[k] is not None:
            s.need = occ[k].ci + 1
            for t in cons[:occ[k].ci + (2 if occ[k].kind == "X" else 1)]:
                assert t.ii is not None and t.ii < i, f"deadlock: {s} waits for {occ[k]} but {t} is not issued yet"
        s.slot = SLOT0 + k * 16384; occ[k] = s
    return X, W, K, V, O, cons, iss

class MS:
    def __init__(s, d, b, cz, reads, pre=None, post=None):
        s.d = d; s.b = b; s.cz = cz; s.reads = reads
        s.pre = pre or []; s.post = post or []; s.fill = []; s.bdep = None; s.ids = []

def gen(cfg):
    stamps = cfg.get("stamps", False)
    TM = cfg.get("tm", "s_memrealtime")
    X, W, K, V, O, cons, iss = build_stages(cfg)
    D = cfg.get("D", 3); NB = D + 1
    assert NB <= 4
    E = Em(); A = E.ins
    NP = cfg.get("NP", 1)
    for s_ in iss:
        s_.pw = s_.ii % NP; s_.pi = s_.ii // NP
    out = []
    out.append(f"; @launch kernel=attn_kernel grid=(256,1,1) block=({256+64*NP},1,1) lds=163840")
    out.append(f"; @launch kernel=red_kernel grid=(448,1,1) block=(256,1,1) lds=0")
    out.append('.amdgcn_target "amdgcn-amd-amdhsa--gfx950"')
    out.append(".text")
    E.raw(".globl attn_kernel"); E.raw(".p2align 8"); E.raw(".type attn_kernel,@function"); E.raw("attn_kernel:")
    A("s_cmp_ge_u32 s2, 256"); A("s_cbranch_scc1 L_done")
    A("s_load_dwordx16 s[36:51], s[0:1], 0")
    A("s_load_dwordx8 s[52:59], s[0:1], 64")
    A("s_load_dwordx2 s[12:13], s[0:1], 96")
    if stamps: A(f"{TM} s[64:65]")
    A("v_lshrrev_b32 v1, 6, v0"); A("v_and_b32 v2, 63, v0"); A("s_nop 0")
    A("v_readfirstlane_b32 s14, v1")
    A("s_and_b32 s3, s2, 7"); A("s_lshr_b32 s4, s2, 3")
    A("s_lshr_b32 s5, s3, 2")
    A("s_and_b32 s6, s3, 3"); A("s_lshl_b32 s6, s6, 2"); A("s_and_b32 s9, s4, 3"); A("s_add_u32 s6, s6, s9")
    A("s_lshr_b32 s7, s4, 2")
    A("s_lshl_b32 s9, s9, 1"); A("s_add_u32 s9, s9, s7"); A("s_sub_u32 s10, s9, 7"); A("s_cmp_ge_u32 s9, 7"); A("s_cselect_b32 s9, s10, s9")
    if not cfg.get("rot", True): A("s_mov_b32 s9, 0")
    A("s_mov_b32 s61, 0")
    A("s_cmp_ge_u32 s14, 4"); A("s_cbranch_scc1 L_prod")

    A("v_and_b32 v3, 31, v2")
    A("v_lshrrev_b32 v4, 5, v2")
    A("v_bfe_u32 v5, v2, 4, 1")
    A("v_bfe_u32 v6, v2, 2, 2")
    A("v_and_b32 v7, 3, v2")
    A("v_bfe_u32 v8, v3, 1, 3"); A("v_xor_b32 v8, v8, v4"); A("v_lshlrev_b32 v8, 4, v8")
    A("v_lshlrev_b32 v9, 5, v1"); A("v_add_u32 v9, v9, v3"); A("v_lshlrev_b32 v9, 7, v9"); A(f"v_add_u32 v{bX}, v8, v9")
    A("v_and_b32 v8, 15, v3"); A("v_xor_b32 v8, v8, v4"); A("v_lshlrev_b32 v8, 4, v8")
    A("v_lshlrev_b32 v9, 9, v3"); A(f"v_add_u32 v{bK}, v8, v9")
    A("v_lshlrev_b32 v8, 2, v4"); A("v_add_u32 v8, v8, v6")
    A("v_lshlrev_b32 v9, 9, v8"); A("v_lshlrev_b32 v10, 6, v6"); A("v_add_u32 v9, v9, v10")
    A("v_lshlrev_b32 v11, 5, v5"); A("v_add_u32 v9, v9, v11")
    A("v_lshlrev_b32 v12, 3, v7"); A(f"v_add_u32 v{bV}, v9, v12")
    A("v_and_b32 v12, 1, v7"); A("v_lshlrev_b32 v12, 4, v12"); A("v_add_u32 v11, v11, v12")
    A("v_lshrrev_b32 v12, 1, v7"); A("v_lshlrev_b32 v12, 3, v12"); A("v_add_u32 v11, v11, v12")
    A("v_lshlrev_b32 v9, 7, v8"); A("v_lshrrev_b32 v12, 1, v6"); A("v_lshlrev_b32 v12, 6, v12"); A("v_add_u32 v9, v9, v12")
    A(f"v_add_u32 v{bO}, v9, v11")
    A("v_lshlrev_b32 v8, 3, v4"); A("v_add_u32 v8, v8, v6"); A("v_lshlrev_b32 v9, 9, v8"); A("v_add_u32 v9, v9, v10")
    A(f"v_add_u32 v{bW}, v9, v11")
    A("v_mul_u32_u24 v8, 28672, v1"); A("v_lshlrev_b32 v9, 4, v2"); A(f"v_add_u32 v{vST}, v8, v9")
    if cfg.get("cpf"):
        A("s_getpc_b64 s[20:21]")
        E.raw("L_pc:")
        A("v_lshlrev_b32 v8, 7, v0")
        for k in range(cfg["cpf"]):
            A("v_min_u32 v9, L_rdone-L_pc, v8")
            A(f"global_load_dword v{QF+k}, v9, s[20:21]")
            A("v_add_u32 v8, 32768, v8")
    A("s_lshl_b32 s3, s14, 8"); A("s_mov_b32 m0, s3")
    A(f"v_mov_b32 v{vC}, 0")
    A(f"ds_write_addtid_b32 v{vC}")
    for p_ in range(NP): A(f"ds_write_addtid_b32 v{vC} offset:{PRODOFF*(p_+1)}")
    A("s_waitcnt lgkmcnt(0)")
    A("s_lshl_b32 s3, s5, 3"); A("s_add_u32 s3, s3, s7"); A("s_lshl_b32 s3, s3, 4"); A("s_add_u32 s3, s3, s6")
    A("s_mul_i32 s3, s3, 114688")
    A("s_add_u32 s16, s12, s3"); A("s_addc_u32 s17, s13, 0"); A("s_mov_b32 s18, 114688"); A("s_mov_b32 s19, 0x20000")
    cs = math.log2(math.e) / 16.0
    A(f"s_mov_b32 s40, {f2u(cs):#x}"); A(f"s_mov_b32 s41, {f2u(-cs):#x}")
    A("s_barrier")

    slow = []
    nst = [1]
    def stamp():
        if stamps:
            k = nst[0]; nst[0] += 1; assert k < 8
            A(f"{TM} s[{64+2*k}:{65+2*k}]")

    def xor_addr(t, base, val):
        return lambda: E.valu(f"v_xor_b32 v{t}, {val:#x}, v{base}", w=[t], r=[base])
    flagid = [None]
    def flag_read():
        flagid[0] = E.ds(f"ds_read_addtid_b32 v{vF} offset:{PRODOFF}", w=[vF])
    def acquire(stages):
        n = max(s.ii for s in stages); tag = f"{stages[-1].kind}{stages[-1].a}_{stages[-1].b}"
        def f():
            if flagid[0] is None: flag_read()
            E.wait(flagid[0]); flagid[0] = None
            E.valu(f"v_cmp_lt_u32 vcc, {n}, v{vF}", r=[vF])
            if not cfg.get("noprod") and not cfg.get("free"): A(f"s_cbranch_vccz L_sl_{tag}")
            E.raw(f"L_ct_{tag}:")
            slow.append((tag, n))
        return f
    def release(st):
        def f():
            E.valu(f"v_mov_b32 v{vC}, {st.ci + 1}", w=[vC])
            E.ds(f"ds_write_addtid_b32 v{vC}", r=[vC])
        return f

    def spread(slots, fl, lo=0, hi=None):
        hi = len(slots) if hi is None else hi
        n = hi - lo
        for i, f in enumerate(fl):
            slots[lo + i * n // len(fl)].fill.append(f)

    def run(slots, FE=4):
        acq = [i for i, s in enumerate(slots) if getattr(s, "acq", False)]
        fr = set(i - FE for i in acq if i - FE >= 0)
        def issue(i):
            s = slots[i]
            if i in fr and flagid[0] is None: flag_read()
            for f in s.pre: f()
            a = AF + 4 * (run.cnt % NB); run.cnt += 1; s.a = a
            o = 0
            for kind, ar, off in s.reads:
                if cfg.get("nords"): s.ids.append(-1); continue
                if kind == "b128":
                    s.ids.append(E.ds(f"ds_read_b128 v[{a}:{a+3}], v{ar} offset:{off}", w=range(a, a + 4), r=[ar]))
                else:
                    s.ids.append(E.ds(f"ds_read_b64_tr_b16 v[{a+o}:{a+o+1}], v{ar} offset:{off}", w=range(a + o, a + o + 2), r=[ar])); o += 2
            for f in s.post: f()
        for i in range(min(D, len(slots))): issue(i)
        for f in getattr(slots[0], "head", []): f()
        for m, s in enumerate(slots):
            if m + D < len(slots): issue(m + D)
            E.wait(s.ids[-1])
            if s.bdep is not None: E.wait(s.bdep[0])
            E.mfma(s.d, s.a, s.b, s.cz)
            for f in s.fill: f()
    run.cnt = 0

    TORD = [0, 4, 1, 5, 2, 6, 3, 7]
    seg = []
    tai = [0]
    def nta():
        tai[0] ^= 1; return ta0 if tai[0] else ta1
    for g in range(7):
        xb = S0 + 16 if g % 2 == 0 else S0
        xid = [[None] for _ in range(4)]
        def xread(s_, g=g, xb=xb, xid=xid):
            def f():
                E.valu(f"v_xor_b32 v{x0}, {X[g].slot | (s_ << 5):#x}, v{bX}", w=[x0], r=[bX])
                xid[s_][0] = E.ds(f"ds_read_b128 v[{xb+4*s_}:{xb+4*s_+3}], v{x0}", w=range(xb + 4 * s_, xb + 4 * s_ + 4), r=[x0])
            return f
        for hf in range(2):
            st = W[g][hf]; first = len(seg)
            for k, t in enumerate(TORD):
                if k % 2 == 0: tr = nta()
                for u in range(2):
                    ms = MS(ACC + 16 * t, xb + 4 * (2 * hf + u), g == 0 and hf == 0 and u == 0,
                            [("tr", tr, (t >> 2) * 256 + (16 * u + 4 * a) * 512) for a in range(2)])
                    if k % 2 == 0 and u == 0: ms.pre.append(xor_addr(tr, bW, st.slot | ((t & 3) << 6)))
                    ms.bdep = xid[2 * hf + u]
                    seg.append(ms)
            if hf == 0:
                seg[first].pre = [acquire([X[g], st]), xread(0)] + seg[first].pre
                seg[first + 1].pre = [xread(1)] + seg[first + 1].pre
                seg[first + 2].pre = [xread(2)] + seg[first + 2].pre
                seg[first + 3].pre = [xread(3), release(X[g])] + seg[first + 3].pre
            else:
                seg[first].pre = [acquire([st])] + seg[first].pre
            seg[first].acq = True
            seg[-1].post.append(release(st))
    p1_end = len(seg)
    if cfg.get("cpf"): seg[40].fill.append(lambda: A("s_waitcnt vmcnt(0)"))
    if stamps:
        seg[0].fill.append(stamp); seg[-1].fill.append(stamp)

    def cvt(dst, a):
        return lambda: E.valu(f"v_cvt_pk_bf16_f32 v{dst}, v{a}, v{a+1}", w=[dst], r=[a, a + 1])
    def mul(r_, by):
        return lambda: E.valu(f"v_mul_f32 v{r_}, v{by}, v{r_}", w=[r_], r=[r_, by])

    def qk(i):
        st = K[i]; sl = []
        for k in range(16):
            s_ = (k >> 1) + 8 * (k & 1)
            if k % 2 == 0: tr = nta()
            ms = MS(S0 + 16 * (i % 2), QF + 4 * s_, k == 0, [("b128", tr, (s_ >> 3) * 256)])
            if k % 2 == 0: ms.pre.append(xor_addr(tr, bK, st.slot | ((s_ & 7) << 5)))
            sl.append(ms)
        sl[0].pre = [acquire([st])] + sl[0].pre; sl[0].acq = True
        sl[-1].post.append(release(st))
        return sl
    def pv(i, order):
        st = V[i]; sl = []; last = None
        for t in order:
            new = last is None or (last & 3) != (t & 3)
            if new: tr = nta()
            last = t
            for u in range(2):
                ms = MS(ACC + 16 * t, S0 + 16 * (i % 2) + 4 * u, i == 0 and u == 0,
                        [("tr", tr, (t >> 2) * 256 + (16 * u + 8 * a) * 512) for a in range(2)])
                if new and u == 0: ms.pre.append(xor_addr(tr, bV, st.slot | ((t & 3) << 6)))
                sl.append(ms)
        sl[0].pre = [acquire([st])] + sl[0].pre; sl[0].acq = True
        sl[-1].post.append(release(st))
        return sl
    def softmax(i):
        s = S0 + 16 * (i % 2); F = []
        def v(t, w, r, **k): F.append(lambda: E.valu(t, w=w, r=r, **k))
        v(f"v_max3_f32 v{x0}, v{s}, v{s+1}, v{s+2}", [x0], [s, s + 1, s + 2])
        v(f"v_max3_f32 v{x1}, v{s+3}, v{s+4}, v{s+5}", [x1], [s + 3, s + 4, s + 5])
        for k, x in zip(range(6, 16, 2), [x0, x1, x0, x1, x0]):
            v(f"v_max3_f32 v{x}, v{x}, v{s+k}, v{s+k+1}", [x], [x, s + k, s + k + 1])
        if i == 0: v(f"v_max_f32 v{x0}, v{x0}, v{x1}", [x0], [x0, x1])
        else: v(f"v_max3_f32 v{x0}, v{x0}, v{x1}, v{rm}", [x0], [x0, x1, rm])
        v(f"v_mov_b32 v{x1}, v{x0}", [x1], [x0])
        v(f"v_permlane32_swap_b32 v{x0}, v{x1}", [x0, x1], [x0, x1], perm=True)
        v(f"v_max_f32 v{x0}, v{x0}, v{x1}", [x0], [x0, x1])
        v(f"v_mul_f32 v{rnb}, s41, v{x0}", [rnb], [x0])
        if i > 0:
            v(f"v_fma_f32 v{ralpha}, v{rm}, s40, v{rnb}", [ralpha], [rm, rnb])
            v(f"v_exp_f32 v{ralpha}, v{ralpha}", [ralpha], [ralpha], trans=True)
        v(f"v_mov_b32 v{rm}, v{x0}", [rm], [x0])
        def fma(k): v(f"v_fma_f32 v{s+k}, v{s+k}, s40, v{rnb}", [s + k], [s + k, rnb])
        def ex(k): v(f"v_exp_f32 v{s+k}, v{s+k}", [s + k], [s + k], trans=True)
        def post(k):
            a = s + 2 * k
            if k == 0: v(f"v_add_f32 v{x0}, v{a}, v{a+1}", [x0], [a, a + 1])
            elif k == 1: v(f"v_add_f32 v{x1}, v{a}, v{a+1}", [x1], [a, a + 1])
            else:
                v(f"v_add_f32 v{x0}, v{x0}, v{a}", [x0], [x0, a]); v(f"v_add_f32 v{x1}, v{x1}, v{a+1}", [x1], [x1, a + 1])
            F.append(cvt(s + k, a))
        fma(0); fma(1)
        for k in range(16):
            ex(k)
            if k + 2 < 16: fma(k + 2)
            if k >= 3 and k % 2 == 1: post((k - 3) // 2)
        post(7)
        if i == 0: v(f"v_add_f32 v{rl}, v{x0}, v{x1}", [rl], [x0, x1])
        else:
            v(f"v_fma_f32 v{rl}, v{rl}, v{ralpha}, v{x0}", [rl], [rl, ralpha, x0])
            v(f"v_add_f32 v{rl}, v{rl}, v{x1}", [rl], [rl, x1])
        return F
    def rescale(t): return [mul(ACC + 16 * t + k, ralpha) for k in range(16)]

    q0 = qk(0); seg += q0
    for k, t in enumerate(TORD):
        fl = [cvt(QF + 8 * t + j, ACC + 16 * t + 2 * j) for j in range(8)]
        at = p1_end - 16 + 2 * k + 1 + 3
        spread(seg, fl, at, at + 2)
    if stamps: seg[-1].fill.append(stamp)
    for i in range(15):
        a = qk(i + 1); f = softmax(i)
        if i > 0: f += rescale(TORD[0])
        spread(a, f, 2 if i == 0 else 0)
        p = pv(i, TORD)
        if i > 0:
            for k in range(7): spread(p, rescale(TORD[k + 1]), 2 * k, 2 * k + 2)
        seg += a + p
    run(seg)
    stamp()
    for f in softmax(15): f()
    E.valu(f"v_mov_b32 v{x1}, v{rl}", w=[x1], r=[rl])
    for t in range(6):
        for f in rescale(t): f()
    E.valu(f"v_permlane32_swap_b32 v{rl}, v{x1}", w=[rl, x1], r=[rl, x1], perm=True)
    E.valu(f"v_add_f32 v{rl}, v{rl}, v{x1}", w=[rl], r=[rl, x1])
    E.valu(f"v_rcp_f32 v{rl}, v{rl}", w=[rl], r=[rl], trans=True)
    seg = pv(15, list(range(8)))
    seg[0].head = rescale(6) + rescale(7)
    if stamps: seg[0].head.append(stamp)
    OUT = [S0, ACC]
    tas = [(ta0, ta1), (ta2, ta3)]
    stg = 0
    blocks = []
    for j in range(7):
        b0 = len(seg)
        for hf in range(2):
            st = O[j][hf]; first = len(seg); tp = tas[(stg + 1) % 2]; stg += 1
            for u8 in range(8):
                for tau in range(2):
                    ms = MS(OUT[j % 2] + 16 * tau, QF + 4 * (8 * hf + u8), hf == 0 and u8 == 0,
                            [("tr", tp[tau], (16 * u8 + 8 * a) * 128) for a in range(2)])
                    if u8 == 0: ms.pre.append(xor_addr(tp[tau], bO, st.slot | (tau << 6)))
                    seg.append(ms)
            seg[first].pre = [acquire([st])] + seg[first].pre; seg[first].acq = True
            seg[-1].post.append(release(st))
        blocks.append(b0)
    for t in range(8):
        fl = [cvt(QF + 8 * t + j, ACC + 16 * t + 2 * j) for j in range(8)]
        at = 2 * t + 1 + 3
        spread(seg, fl, at, at + 2)
    stpol = cfg.get("stpol", "")
    def epi(j):
        F = []
        base = OUT[j % 2]
        def so():
            if j == 0: A("s_lshl_b32 s47, s9, 12")
            else:
                A("s_add_u32 s47, s47, 4096"); A("s_cmp_eq_u32 s47, 28672"); A("s_cselect_b32 s47, 0, s47")
        F.append(so)
        for q in range(4):
            a = base + 8 * q
            F += [mul(a + k, rl) for k in range(8)]
            F += [cvt(a + k, a + 2 * k) for k in range(4)]
            F.append(lambda a=a, q=q: E.store(f"buffer_store_dwordx4 v[{a}:{a+3}], v{vST}, s[16:19], s47 offen offset:{q*1024}{stpol}", range(a, a + 4), r=[vST]))
        return F
    for j in range(6):
        spread(seg, epi(j), blocks[j + 1] + 4, blocks[j + 1] + 30)
    run(seg)
    stamp()
    for f in epi(6): f()
    if stamps:
        A("s_waitcnt vmcnt(0)")
        stamp()
        A("s_cmp_eq_u32 s14, 0"); A("s_cbranch_scc0 L_done")
        A("s_mov_b32 s3, 0"); A("s_branch L_dump")
    A("s_endpgm")
    for tag, n in slow:
        E.raw(f"L_sl_{tag}:")
        A(f"ds_read_addtid_b32 v{vF} offset:{PRODOFF}")
        A("s_add_u32 s61, s61, 1"); A("s_cmp_gt_u32 s61, 0x40000"); A(f"s_cbranch_scc1 L_ct_{tag}")
        A("s_waitcnt lgkmcnt(0)")
        A(f"v_cmp_lt_u32 vcc, {n}, v{vF}")
        A(f"s_cbranch_vccz L_sl_{tag}")
        A(f"s_branch L_ct_{tag}")

    E.raw("L_prod:")
    A("s_setprio 3")
    A("v_lshrrev_b32 v3, 5, v2")
    A("v_and_b32 v4, 31, v2")
    A("v_lshrrev_b32 v5, 3, v2")
    A("v_and_b32 v6, 7, v2")
    A("v_mul_u32_u24 v7, 896, v5")
    A("v_lshrrev_b32 v8, 1, v5")
    VX = [16, 17]; VW = [18, 19]; VV = [20, 21]; VO = 22; VK = list(range(24, 32)); VP = 32; VPA = 33; VSA = 34; VS = 36
    for j in range(2):
        A(f"v_add_u32 v9, {4*j}, v8"); A("v_and_b32 v9, 7, v9"); A("v_xor_b32 v9, v9, v6"); A("v_lshlrev_b32 v9, 4, v9")
        A(f"v_add_u32 v{VX[j]}, v7, v9")
        A(f"v_add_u32 v9, {2*j}, v3"); A("v_lshlrev_b32 v9, 2, v9"); A("v_xor_b32 v9, v9, v4"); A("v_lshlrev_b32 v9, 4, v9")
        A("v_lshlrev_b32 v10, 13, v3"); A(f"v_add_u32 v{VW[j]}, v9, v10")
        A("v_lshlrev_b32 v10, 9, v3"); A(f"v_add_u32 v{VV[j]}, v9, v10")
    A("s_waitcnt lgkmcnt(0)")
    A("s_cmp_eq_u32 s5, 0")
    for d, a, b in ((16, 36, 46), (28, 42, 52), (20, 38, 48), (24, 40, 50), (32, 44, 54)):
        A(f"s_cselect_b32 s{d}, s{a}, s{b}"); A(f"s_cselect_b32 s{d+1}, s{a+1}, s{b+1}")
        A(f"s_mov_b32 s{d+3}, 0x20000")
    A("s_mul_i32 s8, s7, 114688"); A("s_add_u32 s16, s16, s8"); A("s_addc_u32 s17, s17, 0"); A("s_mov_b32 s18, 114688")
    A("s_lshl_b32 s8, s6, 9"); A("s_add_u32 s28, s28, s8"); A("s_addc_u32 s29, s29, 0"); A(f"s_sub_u32 s30, {448*8192}, s8")
    late = []
    def late_setup():
        A("s_lshl_b32 s8, s7, 4"); A("s_add_u32 s8, s8, s6"); A("s_lshl_b32 s8, s8, 18")
        A("s_add_u32 s20, s20, s8"); A("s_addc_u32 s21, s21, 0"); A("s_add_u32 s24, s24, s8"); A("s_addc_u32 s25, s25, 0")
        A("s_mov_b32 s22, 262144"); A("s_mov_b32 s26, 262144")
        A("s_mul_i32 s8, s6, 229376"); A("s_add_u32 s32, s32, s8"); A("s_addc_u32 s33, s33, 0"); A("s_mov_b32 s34, 229376")
        A("v_and_b32 v9, 1, v8"); A("v_lshlrev_b32 v9, 2, v9"); A("v_xor_b32 v9, v9, v6"); A("v_lshlrev_b32 v9, 4, v9")
        A(f"v_add_u32 v{VO}, v7, v9")
        A("v_lshlrev_b32 v10, 9, v3")
        for i in range(8):
            A(f"v_add_u32 v9, {2*i}, v3"); A("v_xor_b32 v9, v9, v4"); A("v_lshlrev_b32 v9, 4, v9"); A(f"v_add_u32 v{VK[i]}, v9, v10")
        A(f"v_and_b32 v{VPA}, 3, v2"); A(f"v_lshlrev_b32 v{VPA}, 8, v{VPA}")
        A(f"v_lshlrev_b32 v{VSA}, 4, v2")
        A("s_mov_b32 s60, 0")
        A("s_barrier")
        if cfg.get("noprod"): A("s_endpgm")
    Wn = cfg.get("W", 32)
    ntkv = " nt" if cfg.get("ntkv", True) else ""
    ntw = " nt" if cfg.get("ntw", False) else ""
    issued = 0
    ends = []
    pslow = []
    pst = [8]
    def pstamp():
        if stamps:
            k = pst[0]; pst[0] += 1; assert k < 16
            A(f"{TM} s[{64+2*k}:{65+2*k}]")
    def signal(n, st=True):
        if st and cfg.get("p64") and n - cfg.get("p64o", 0) in range(1, 64):
            A(f"{TM} s[62:63]"); A("s_waitcnt lgkmcnt(0)"); A(f"v_writelane_b32 v40, s62, {n - cfg.get('p64o', 0)}")
        A(f"s_max_u32 s60, s60, {n}")
        for k in range(4): A(f"v_mov_b32 v{VS+k}, s60")
        A(f"ds_write_b128 v{VSA}, v[{VS}:{VS+3}] offset:{PRODOFF}")
    LS = min(2, Wn // 16, min(i for i, t in enumerate(iss) if t.kind in "KVO"))
    for si, st in enumerate(iss):
        if si == LS: late_setup()
        if st.need > 0:
            assert si > LS
            A("s_waitcnt lgkmcnt(0)")
            A(f"v_cmp_gt_u32 vcc, {st.need}, v{VP}")
            if not cfg.get("free"): A(f"s_cbranch_vccnz L_ps_{si}")
            E.raw(f"L_pc_{si}:")
            pslow.append((si, st.need))
        if si + 1 < len(iss) and iss[si + 1].need > 0:
            A(f"ds_read_b32 v{VP}, v{VPA}")
        if st.kind == "X":
            if st.a == 0: A("s_mov_b32 s41, s9")
            else:
                A("s_add_u32 s41, s41, 1"); A("s_cmp_eq_u32 s41, 7"); A("s_cselect_b32 s41, 0, s41")
            A("s_lshl_b32 s42, s41, 7"); A("s_lshl_b32 s43, s41, 19")
        if st.kind == "O" and st.b == 0:
            if st.a == 0: A("s_lshl_b32 s46, s9, 7")
            else:
                A("s_add_u32 s46, s46, 128"); A("s_cmp_eq_u32 s46, 896"); A("s_cselect_b32 s46, 0, s46")
        for p in range(16):
            off = (p % 4) * 1024
            if issued >= Wn and (p % cfg.get("wstep", 2) == 0):
                A(f"s_waitcnt vmcnt({Wn - cfg.get('wstep', 2)})")
                done = issued - (Wn - cfg.get("wstep", 2))
                sig = None
                while ends and ends[0][0] <= done: sig = ends.pop(0)[1]
                if sig is not None: signal(sig + 1)
            if p % 4 == 0: A(f"s_mov_b32 m0, {st.slot + (p // 4) * 4096}")
            if st.kind in "KV":
                if p % 4 == 0: A(f"s_mov_b32 s44, {st.a * 16384 + (p // 4) * 4096}")
                v = VK[p % 8] if st.kind == "K" else VV[p % 2]
                srd = "s[20:23]" if st.kind == "K" else "s[24:27]"; pol = ntkv
            elif st.kind == "W":
                A(f"s_add_u32 s44, s43, {(32 * st.b + 2 * p) * 8192 - off}"); v = VW[p % 2]; srd = "s[28:31]"; pol = ntw
            elif st.kind == "X":
                A(f"s_add_u32 s44, s42, {8 * p * 896 - off}"); v = VX[p % 2]; srd = "s[16:19]"; pol = ntw
            else:
                A(f"s_add_u32 s44, s46, {(128 * st.b + 8 * p) * 896 - off}"); v = VO; srd = "s[32:35]"; pol = ntw
            A(f"buffer_load_dwordx4 v{v}, {srd}, s44 offen offset:{off}{pol} lds")
            issued += 1
        ends.append((issued, si))
        if st in (W[6][1], K[8], V[15]): pstamp()
    while ends:
        e, si = ends.pop(0)
        A(f"s_waitcnt vmcnt({issued - e})"); signal(si + 1)
    pstamp()
    if cfg.get("p64"):
        A("v_writelane_b32 v40, s64, 0")
        A("s_lshl_b32 s8, s2, 8"); A(f"s_add_u32 s8, s8, {201<<20}")
        A("s_add_u32 s62, s12, s8"); A("s_addc_u32 s63, s13, 0")
        A("v_lshlrev_b32 v41, 2, v2")
        A("global_store_dword v41, v40, s[62:63]")
    if stamps:
        A("s_mov_b32 s3, 64")
        E.raw("L_dump:")
        A("s_waitcnt lgkmcnt(0)")
        A("s_lshl_b32 s8, s2, 7"); A(f"s_add_u32 s8, s8, {200<<20}"); A("s_add_u32 s8, s8, s3")
        A("s_add_u32 s12, s12, s8"); A("s_addc_u32 s13, s13, 0")
        A("s_cmp_eq_u32 s3, 0"); A("s_cbranch_scc1 L_dump2")
        for k in range(16): A(f"s_mov_b32 s{64+k}, s{80+k}")
        E.raw("L_dump2:")
        for k in range(16): A(f"v_mov_b32 v{8+k}, s{64+k}")
        A("v_mov_b32 v4, 0")
        A("s_mov_b64 exec, 1")
        for k in range(4): A(f"global_store_dwordx4 v4, v[{8+4*k}:{11+4*k}], s[12:13] offset:{16*k}")
    E.raw("L_done:")
    A("s_endpgm")
    for si, need in pslow:
        E.raw(f"L_ps_{si}:")
        A(f"ds_read_b32 v{VP}, v{VPA}")
        A("s_waitcnt lgkmcnt(0)")
        A(f"v_cmp_gt_u32 vcc, {need}, v{VP}")
        A(f"s_cbranch_vccz L_pc_{si}")
        A("s_waitcnt vmcnt(0)")
        signal(si, False)
        E.raw(f"L_pl_{si}:")
        A(f"ds_read_b32 v{VP}, v{VPA}")
        A("s_add_u32 s61, s61, 1"); A("s_cmp_gt_u32 s61, 0x40000"); A(f"s_cbranch_scc1 L_pc_{si}")
        A("s_waitcnt lgkmcnt(0)")
        A(f"v_cmp_gt_u32 vcc, {need}, v{VP}")
        A(f"s_cbranch_vccnz L_pl_{si}")
        A(f"s_branch L_pc_{si}")

    E.raw(".globl red_kernel"); E.raw(".p2align 8"); E.raw(".type red_kernel,@function"); E.raw("red_kernel:")
    A("s_cmp_ge_u32 s2, 448"); A("s_cbranch_scc1 L_rdone")
    A("s_load_dwordx2 s[4:5], s[0:1], 96")
    A("s_load_dwordx2 s[8:9], s[0:1], 80")
    A("s_and_b32 s12, s2, 15"); A("s_lshr_b32 s13, s2, 4"); A("s_and_b32 s14, s13, 3"); A("s_lshr_b32 s15, s13, 2")
    A("v_and_b32 v1, 7, v0")
    A("v_bfe_u32 v2, v0, 3, 3")
    A("v_lshrrev_b32 v3, 6, v0")
    A("v_lshlrev_b32 v3, 3, v3"); A("v_add_u32 v3, v3, v1")
    A("v_lshlrev_b32 v4, 9, v2"); A("v_lshlrev_b32 v5, 4, v3"); A("v_add_u32 v4, v4, v5")
    A("v_mul_u32_u24 v5, 1792, v3"); A("v_lshlrev_b32 v6, 4, v2"); A("v_add_u32 v5, v5, v6")
    A(f"s_mul_i32 s16, s12, {16*114688}"); A("s_mul_i32 s17, s14, 28672"); A("s_lshl_b32 s18, s15, 12")
    A("s_add_u32 s17, s17, s18")
    A("s_and_b32 s19, s12, 7"); A("s_lshl_b32 s19, s19, 2"); A("s_add_u32 s19, s19, s14"); A(f"s_mul_i32 s19, s19, {32*1792}")
    A("s_lshr_b32 s20, s12, 3"); A("s_mul_i32 s20, s20, 896"); A("s_add_u32 s19, s19, s20")
    A("s_lshl_b32 s20, s15, 7"); A("s_add_u32 s19, s19, s20")
    A("s_waitcnt lgkmcnt(0)")
    A("s_add_u32 s4, s4, s16"); A("s_addc_u32 s5, s5, 0"); A(f"s_mov_b32 s6, {16*114688}"); A("s_mov_b32 s7, 0x20000")
    A(f"s_mov_b32 s10, {8*128*896*2}"); A("s_mov_b32 s11, 0x20000")
    rpol = cfg.get("rpol", "")
    for h in range(16):
        A(f"buffer_load_dwordx4 v[{16+4*h}:{19+4*h}], v4, s[4:7], s17 offen{rpol}")
        if h < 15: A("s_add_u32 s17, s17, 114688")
    A("s_mov_b32 s21, 0xffff0000")
    for h in range(16):
        A(f"s_waitcnt vmcnt({15-h})")
        for k in range(4):
            r = 16 + 4 * h + k
            if h == 0:
                A(f"v_lshlrev_b32 v{8+2*k}, 16, v{r}"); A(f"v_and_b32 v{9+2*k}, s21, v{r}")
            else:
                A(f"v_lshlrev_b32 v6, 16, v{r}"); A(f"v_and_b32 v7, s21, v{r}")
                A(f"v_add_f32 v{8+2*k}, v{8+2*k}, v6"); A(f"v_add_f32 v{9+2*k}, v{9+2*k}, v7")
    for k in range(4): A(f"v_cvt_pk_bf16_f32 v{16+k}, v{8+2*k}, v{9+2*k}")
    A("buffer_store_dwordx4 v[16:19], v5, s[8:11], s19 offen")
    E.raw("L_rdone:")
    A("s_endpgm")

    out += E.L
    out.append('.section .rodata,"a"')
    for kname, vg in (("attn_kernel", 256), ("red_kernel", 80)):
        out.append(".p2align 6"); out.append(f".amdhsa_kernel {kname}")
        out.append(f"  .amdhsa_next_free_vgpr {vg}"); out.append("  .amdhsa_next_free_sgpr 96"); out.append(f"  .amdhsa_accum_offset {vg}")
        out.append("  .amdhsa_group_segment_fixed_size 0"); out.append("  .amdhsa_kernarg_size 104"); out.append("  .amdhsa_user_sgpr_count 2")
        out.append("  .amdhsa_user_sgpr_kernarg_segment_ptr 1"); out.append("  .amdhsa_system_sgpr_workgroup_id_x 1"); out.append(".end_amdhsa_kernel")
    sys.stderr.write(f"instrs {E.n} nops {E.nops} issue order: {iss}\n")
    return "\n".join(out) + "\n"

BASE = dict(ins={4: 2, 10: 2}, oins={}, W=32, D=3)
if __name__ == "__main__":
    import json
    cfg = dict(BASE)
    path = sys.argv[1]
    for a in sys.argv[2:]:
        k, v = a.split("=", 1)
        cfg[k] = eval(v)
    open(path, "w").write(gen(cfg))
```

```python
import sys, struct, math
from gen1 import Em, f2u, MS

ACC = 0
XB = [144, 128]
QF = 160
AF = 224
bK, bV, ta0, ta1, rm, rl, rnb, x0, x1, vC, vF, al2, al3, al4, bO, vST = range(240, 256)
bX = al2; bW = al3
ta2 = bK; ta3 = rm
SLOT0 = 16384; NSLOT = 9
PRODOFF = 1024

class Stage:
    def __init__(s, kind, a, b=0):
        s.kind = kind; s.a = a; s.b = b; s.slot = None; s.ci = None; s.ii = None; s.need = 0
    def __repr__(s): return f"{s.kind}{s.a}.{s.b}"

def build_stages(cfg):
    NP = cfg["NP"]
    X = [Stage("X", g) for g in range(7)]
    W = [[Stage("W", g, h) for h in range(2)] for g in range(7)]
    K = [Stage("K", i) for i in range(16)]
    V = [[Stage("V", c, i) for i in range(8)] for c in range(2)]
    O = [[Stage("O", j, h) for h in range(2)] for j in range(7)]
    ev = [("a", X[0]), ("r", X[0])]
    for g in range(7):
        ev += [("a", W[g][0]), ("r", W[g][0]), ("a", W[g][1])]
        if g < 6: ev += [("a", X[g + 1]), ("r", X[g + 1])]
        ev += [("r", W[g][1])]
    KV = K + V[0] + V[1]
    OL = [O[j][h] for j in range(7) for h in range(2)]
    for s in KV + OL: ev += [("a", s), ("r", s)]
    cons = [s for k, s in ev if k == "r"]
    for i, s in enumerate(cons): s.ci = i
    WL = [s for k, s in ev if k == "a" and s.kind in "XW"]
    iss = []; kv = list(KV); ol = list(OL)
    for _ in range(cfg["ins"].get(-1, 0)): iss.append(kv.pop(0))
    for i, s in enumerate(WL):
        iss.append(s)
        for _ in range(cfg["ins"].get(i, 0)): iss.append(kv.pop(0))
    while kv:
        left = len(kv)
        for _ in range(cfg["oins"].get(left, 0)): iss.append(ol.pop(0))
        iss.append(kv.pop(0))
    iss += ol
    occ = [None] * NSLOT
    for i, s in enumerate(iss):
        s.ii = i; s.pw = i % NP; s.pi = i // NP
        k = min(range(NSLOT), key=lambda j: -1 if occ[j] is None else occ[j].ci)
        if occ[k] is not None: s.need = occ[k].ci + 1
        s.slot = SLOT0 + k * 16384; occ[k] = s
    pos = [0] * NP; lists = [iss[p::NP] for p in range(NP)]; e = 0; rel = 0; done = set()
    prog = True
    while prog:
        prog = False
        for p in range(NP):
            while pos[p] < len(lists[p]) and lists[p][pos[p]].need <= rel:
                done.add(id(lists[p][pos[p]])); pos[p] += 1; prog = True
        while e < len(ev) and (ev[e][0] == "r" or id(ev[e][1]) in done):
            if ev[e][0] == "r": rel += 1
            e += 1; prog = True
    assert e == len(ev) and all(pos[p] == len(lists[p]) for p in range(NP)), f"deadlock at {ev[e]}"
    return X, W, K, V, O, cons, iss

def gen(cfg):
    stamps = cfg.get("stamps", False)
    TM = cfg.get("tm", "s_memrealtime")
    NP = cfg["NP"]
    X, W, K, V, O, cons, iss = build_stages(cfg)
    E = Em(); A = E.ins
    out = []
    out.append(f"; @launch kernel=attn_kernel grid=(256,1,1) block=({256+64*NP},1,1) lds=163840")
    out.append(f"; @launch kernel=red_kernel grid=(448,1,1) block=(256,1,1) lds=0")
    out.append('.amdgcn_target "amdgcn-amd-amdhsa--gfx950"')
    out.append(".text")
    E.raw(".globl attn_kernel"); E.raw(".p2align 8"); E.raw(".type attn_kernel,@function"); E.raw("attn_kernel:")
    A("s_cmp_ge_u32 s2, 256"); A("s_cbranch_scc1 L_done")
    A("s_load_dwordx16 s[36:51], s[0:1], 0")
    A("s_load_dwordx8 s[52:59], s[0:1], 64")
    A("s_load_dwordx2 s[12:13], s[0:1], 96")
    if stamps: A(f"{TM} s[64:65]")
    A("v_lshrrev_b32 v1, 6, v0"); A("v_and_b32 v2, 63, v0"); A("s_nop 0")
    A("v_readfirstlane_b32 s14, v1")
    A("s_and_b32 s3, s2, 7"); A("s_lshr_b32 s4, s2, 3")
    A("s_lshr_b32 s5, s3, 2")
    A("s_and_b32 s6, s3, 3"); A("s_lshl_b32 s6, s6, 2"); A("s_and_b32 s9, s4, 3"); A("s_add_u32 s6, s6, s9")
    A("s_lshr_b32 s7, s4, 2")
    A("s_lshl_b32 s9, s9, 1"); A("s_add_u32 s9, s9, s7"); A("s_sub_u32 s10, s9, 7"); A("s_cmp_ge_u32 s9, 7"); A("s_cselect_b32 s9, s10, s9")
    A("s_mov_b32 s10, s9")
    if not cfg.get("rot", True): A("s_mov_b32 s9, 0")
    if not cfg.get("roto", True): A("s_mov_b32 s10, 0")
    A("s_mov_b32 s61, 0")
    A("s_cmp_ge_u32 s14, 4"); A("s_cbranch_scc1 L_prod")

    def srds(which):
        A("s_cmp_eq_u32 s5, 0")
        tab = dict(x=(16, 36, 46), wq=(28, 42, 52), k=(20, 38, 48), v=(24, 40, 50), wo=(32, 44, 54))
        for n in which:
            d, a, b = tab[n]
            A(f"s_cselect_b32 s{d}, s{a}, s{b}"); A(f"s_cselect_b32 s{d+1}, s{a+1}, s{b+1}")
            A(f"s_mov_b32 s{d+3}, 0x20000")
        if "x" in which:
            A("s_mul_i32 s8, s7, 114688"); A("s_add_u32 s16, s16, s8"); A("s_addc_u32 s17, s17, 0"); A("s_mov_b32 s18, 114688")
        if "wq" in which:
            A("s_lshl_b32 s8, s6, 9"); A("s_add_u32 s28, s28, s8"); A("s_addc_u32 s29, s29, 0"); A(f"s_sub_u32 s30, {448*8192}, s8")
        if "k" in which:
            A("s_lshl_b32 s8, s7, 4"); A("s_add_u32 s8, s8, s6"); A("s_lshl_b32 s8, s8, 18")
            A("s_add_u32 s20, s20, s8"); A("s_addc_u32 s21, s21, 0"); A("s_add_u32 s24, s24, s8"); A("s_addc_u32 s25, s25, 0")
            A("s_mov_b32 s22, 262144"); A("s_mov_b32 s26, 262144")
        if "wo" in which:
            A("s_mul_i32 s8, s6, 229376"); A("s_add_u32 s32, s32, s8"); A("s_addc_u32 s33, s33, 0"); A("s_mov_b32 s34, 229376")

    if cfg.get("cpf"):
        A("s_getpc_b64 s[20:21]")
        E.raw("L_pc:")
        A("v_lshlrev_b32 v8, 7, v0")
        for k in range(cfg["cpf"]):
            A("v_min_u32 v9, L_rdone-L_pc, v8")
            A(f"global_load_dword v{QF+k}, v9, s[20:21]")
            A("v_add_u32 v8, 32768, v8")
    A("v_and_b32 v3, 31, v2")
    A("v_lshrrev_b32 v4, 5, v2")
    A("v_bfe_u32 v5, v2, 4, 1")
    A("v_bfe_u32 v6, v2, 2, 2")
    A("v_and_b32 v7, 3, v2")
    A("v_bfe_u32 v8, v3, 1, 3"); A("v_xor_b32 v8, v8, v4"); A("v_lshlrev_b32 v8, 4, v8")
    A("v_lshlrev_b32 v9, 5, v1"); A("v_add_u32 v9, v9, v3"); A("v_lshlrev_b32 v9, 7, v9"); A(f"v_add_u32 v{bX}, v8, v9")
    A("v_and_b32 v8, 15, v3"); A("v_xor_b32 v8, v8, v4"); A("v_lshlrev_b32 v8, 4, v8")
    A("v_lshlrev_b32 v9, 9, v3"); A(f"v_add_u32 v{bK}, v8, v9")
    A("v_lshlrev_b32 v8, 2, v4"); A("v_add_u32 v8, v8, v6")
    A("v_lshlrev_b32 v9, 8, v8"); A("v_lshlrev_b32 v10, 6, v6"); A("v_add_u32 v9, v9, v10")
    A("v_lshlrev_b32 v11, 5, v5"); A("v_add_u32 v9, v9, v11")
    A("v_lshlrev_b32 v12, 3, v7"); A(f"v_add_u32 v{bV}, v9, v12")
    A("v_and_b32 v12, 1, v7"); A("v_lshlrev_b32 v12, 4, v12"); A("v_add_u32 v11, v11, v12")
    A("v_lshrrev_b32 v12, 1, v7"); A("v_lshlrev_b32 v12, 3, v12"); A("v_add_u32 v11, v11, v12")
    A("v_lshlrev_b32 v9, 7, v8"); A("v_lshrrev_b32 v12, 1, v6"); A("v_lshlrev_b32 v12, 6, v12"); A("v_add_u32 v9, v9, v12")
    A(f"v_add_u32 v{bO}, v9, v11")
    A("v_lshlrev_b32 v8, 3, v4"); A("v_add_u32 v8, v8, v6"); A("v_lshlrev_b32 v9, 9, v8"); A("v_add_u32 v9, v9, v10")
    A(f"v_add_u32 v{bW}, v9, v11")
    A("v_mul_u32_u24 v8, 28672, v1"); A("v_lshlrev_b32 v9, 4, v2"); A(f"v_add_u32 v{vST}, v8, v9")
    A("s_lshl_b32 s3, s14, 8"); A("s_mov_b32 m0, s3")
    A(f"v_mov_b32 v{vC}, 0")
    A(f"ds_write_addtid_b32 v{vC}")
    for p_ in range(NP): A(f"ds_write_addtid_b32 v{vC} offset:{PRODOFF*(p_+1)}")
    A("s_waitcnt lgkmcnt(0)")
    A("s_barrier")
    touch = cfg.get("touch", "")
    if touch:
        srds([n for n in ("x", "wq", "wo") if n in touch.split(",")])
        k = 8
        if "wq" in touch:
            A("v_lshrrev_b32 v8, 2, v0"); A("v_min_u32 v8, 55, v8"); A("v_lshlrev_b32 v8, 13, v8")
            A("v_and_b32 v9, 3, v0"); A("v_lshlrev_b32 v9, 7, v9"); A("v_add_u32 v8, v8, v9")
            A(f"s_mul_i32 s8, s7, {56*8192}")
            A(f"buffer_load_dword v{QF+k}, v8, s[28:31], s8 offen"); k += 1
        if "x" in touch:
            A("v_min_u32 v8, 223, v0"); A("v_lshlrev_b32 v8, 7, v8")
            A("s_and_b32 s8, s6, 3"); A(f"s_mul_i32 s8, s8, {224*128}")
            A(f"buffer_load_dword v{QF+k}, v8, s[16:19], s8 offen"); k += 1
        if "wo" in touch:
            A("v_min_u32 v8, 223, v0"); A("v_lshlrev_b32 v8, 7, v8")
            A(f"s_mul_i32 s8, s7, {224*128}")
            A(f"buffer_load_dword v{QF+k}, v8, s[32:35], s8 offen"); k += 1
    A("s_lshl_b32 s3, s5, 3"); A("s_add_u32 s3, s3, s7"); A("s_lshl_b32 s3, s3, 4"); A("s_add_u32 s3, s3, s6")
    A("s_mul_i32 s3, s3, 114688")
    A("s_add_u32 s24, s12, s3"); A("s_addc_u32 s25, s13, 0"); A("s_mov_b32 s26, 114688"); A("s_mov_b32 s27, 0x20000")
    cs = math.log2(math.e) / 16.0
    A(f"s_mov_b32 s40, {f2u(cs):#x}"); A(f"s_mov_b32 s41, {f2u(-cs):#x}")

    slow = []
    nst = [1]
    def stamp():
        if stamps:
            k = nst[0]; nst[0] += 1; assert k < 8
            A(f"{TM} s[{64+2*k}:{65+2*k}]")
    def xor_addr(t, base, val):
        return lambda: E.valu(f"v_xor_b32 v{t}, {val:#x}, v{base}", w=[t], r=[base])
    flagid = [None, None]
    def flag_read(st):
        assert flagid[0] is None
        flagid[0] = E.ds(f"ds_read_addtid_b32 v{vF} offset:{PRODOFF*(st.pw+1)}", w=[vF]); flagid[1] = st
    nowait = cfg.get("noprod") or cfg.get("free")
    def acquire(st):
        tag = f"{st.kind}{st.a}_{st.b}"
        def f():
            if flagid[0] is None: flag_read(st)
            assert flagid[1] is st
            E.wait(flagid[0]); flagid[0] = None
            E.valu(f"v_cmp_lt_u32 vcc, {st.pi}, v{vF}", r=[vF])
            if not nowait: A(f"s_cbranch_vccz L_sl_{tag}")
            E.raw(f"L_ct_{tag}:")
            slow.append((tag, st))
        return f
    relc = [0]
    def release(st):
        def f():
            assert st.ci == relc[0], (st, st.ci, relc[0]); relc[0] += 1
            E.valu(f"v_mov_b32 v{vC}, {st.ci + 1}", w=[vC])
            E.ds(f"ds_write_addtid_b32 v{vC}", r=[vC])
        return f
    def add_acq(ms, st):
        ms.pre = [acquire(st)] + ms.pre; ms.acq = st
    def spread(slots, fl, lo=0, hi=None):
        hi = len(slots) if hi is None else hi
        n = hi - lo
        for i, f in enumerate(fl):
            slots[lo + i * n // len(fl)].fill.append(f)

    D = cfg.get("D", 3); FE = cfg.get("FE", 4)
    def run(slots):
        NB = D + 1
        fr = {i - FE: s.acq for i, s in enumerate(slots) if getattr(s, "acq", None) is not None and i - FE >= 0}
        def issue(i):
            s = slots[i]
            for f in s.pre: f()
            if i in fr and flagid[0] is None: flag_read(fr[i])
            a = AF + 4 * (run.cnt % NB); run.cnt += 1; s.a = a
            o = 0
            for kind, ar, off in s.reads:
                if cfg.get("nords"): s.ids.append(-1); continue
                if kind == "b128":
                    s.ids.append(E.ds(f"ds_read_b128 v[{a}:{a+3}], v{ar} offset:{off}", w=range(a, a + 4), r=[ar]))
                else:
                    s.ids.append(E.ds(f"ds_read_b64_tr_b16 v[{a+o}:{a+o+1}], v{ar} offset:{off}", w=range(a + o, a + o + 2), r=[ar])); o += 2
            for f in s.post: f()
        for i in range(min(D, len(slots))): issue(i)
        for m, s in enumerate(slots):
            if m + D < len(slots): issue(m + D)
            E.wait(s.ids[-1])
            E.mfma(s.d, s.a, s.b, s.cz)
            for f in s.fill: f()
    run.cnt = 0

    TORD = [0, 4, 1, 5, 2, 6, 3, 7]
    seg = []
    tai = [0]
    def nta():
        tai[0] ^= 1; return ta0 if tai[0] else ta1
    def xread(g, s_):
        xb = XB[g % 2]
        def f():
            E.valu(f"v_xor_b32 v{x0}, {X[g].slot | (s_ << 5):#x}, v{bX}", w=[x0], r=[bX])
            E.ds(f"ds_read_b128 v[{xb+4*s_}:{xb+4*s_+3}], v{x0}", w=range(xb + 4 * s_, xb + 4 * s_ + 4), r=[x0])
        return f
    acquire(X[0])()
    for s_ in range(4): xread(0, s_)()
    release(X[0])()
    for g in range(7):
        xb = XB[g % 2]
        for hf in range(2):
            st = W[g][hf]; first = len(seg)
            for k, t in enumerate(TORD):
                if k % 2 == 0: tr = nta()
                for u in range(2):
                    ms = MS(ACC + 16 * t, xb + 4 * (2 * hf + u), g == 0 and hf == 0 and u == 0,
                            [("tr", tr, (t >> 2) * 256 + (16 * u + 4 * a) * 512) for a in range(2)])
                    if k % 2 == 0 and u == 0: ms.pre.append(xor_addr(tr, bW, st.slot | ((t & 3) << 6)))
                    seg.append(ms)
            add_acq(seg[first], st)
            if hf == 1 and g < 6:
                for s_ in range(4): seg[first + 6 + s_].pre.append(xread(g + 1, s_))
                add_acq(seg[first + 6], X[g + 1])
                seg[first + 9].pre.append(release(X[g + 1]))
            seg[-1].post.append(release(st))
    p1_end = len(seg)
    if cfg.get("cpf") or touch: seg[100].fill.append(lambda: A("s_waitcnt vmcnt(0)"))
    if stamps:
        seg[0].fill.append(stamp); seg[-1].fill.append(stamp)

    def cvt(dst, a):
        return lambda: E.valu(f"v_cvt_pk_bf16_f32 v{dst}, v{a}, v{a+1}", w=[dst], r=[a, a + 1])
    def mul(r_, by):
        return lambda: E.valu(f"v_mul_f32 v{r_}, v{by}, v{r_}", w=[r_], r=[r_, by])
    def V_(t, w, r, **k): return lambda: E.valu(t, w=w, r=r, **k)

    C = lambda i: 16 * i
    Sc = {0: 8, 1: 0, 2: 1, 3: 2,  4: 3, 5: 4, 6: 5, 7: 6,  8: 7, 9: 9, 10: 0, 11: 2,  12: 4, 13: 6, 14: 9, 15: 2}
    Pr = {t: C(Sc[t & ~1]) + 8 * (t & 1) for t in range(16)}
    free_cells = sorted(set(range(10)) - set(Sc[t] for t in range(0, 16, 2)))
    assert free_cells == [2, 6], free_cells

    def qk(i):
        st = K[i]; sl = []
        for k in range(16):
            s_ = (k >> 1) + 8 * (k & 1)
            if k % 2 == 0: tr = nta()
            ms = MS(C(Sc[i]), QF + 4 * s_, k == 0, [("b128", tr, (s_ >> 3) * 256)])
            if k % 2 == 0: ms.pre.append(xor_addr(tr, bK, st.slot | ((s_ & 7) << 5)))
            sl.append(ms)
        add_acq(sl[0], st)
        sl[-1].post.append(release(st))
        return sl
    def tmax(t):
        s = C(Sc[t]); F = []
        if t % 4 == 0:
            if t == 0: F.append(V_(f"v_max_f32 v{x1}, v{s}, v{s+1}", [x1], [s, s + 1]))
            else: F.append(V_(f"v_max3_f32 v{x1}, v{rm}, v{s}, v{s+1}", [x1], [rm, s, s + 1]))
            k0 = 2
        else: k0 = 0
        for k in range(k0, 16, 2): F.append(V_(f"v_max3_f32 v{x1}, v{x1}, v{s+k}, v{s+k+1}", [x1], [x1, s + k, s + k + 1]))
        return F
    AL = {1: al2, 2: al3, 3: al4}
    def gmax(g):
        F = []
        F.append(V_(f"v_mov_b32 v{x0}, v{x1}", [x0], [x1]))
        F.append(V_(f"v_permlane32_swap_b32 v{x0}, v{x1}", [x0, x1], [x0, x1], perm=True))
        F.append(V_(f"v_max_f32 v{x0}, v{x0}, v{x1}", [x0], [x0, x1]))
        F.append(V_(f"v_mul_f32 v{rnb}, s41, v{x0}", [rnb], [x0]))
        if g > 0:
            a = AL[g]
            F.append(V_(f"v_fma_f32 v{a}, v{rm}, s40, v{rnb}", [a], [rm, rnb]))
            F.append(V_(f"v_exp_f32 v{a}, v{a}", [a], [a], trans=True))
        F.append(V_(f"v_mov_b32 v{rm}, v{x0}", [rm], [x0]))
        if g > 0: F.append(V_(f"v_mul_f32 v{rl}, v{rl}, v{AL[g]}", [rl], [rl, AL[g]]))
        else: F.append(V_(f"v_mov_b32 v{rl}, 0", [rl], []))
        return F
    def texp(t, pack=True):
        s = C(Sc[t]); F = []
        def fma(k): F.append(V_(f"v_fma_f32 v{s+k}, v{s+k}, s40, v{rnb}", [s + k], [s + k, rnb]))
        def ex(k): F.append(V_(f"v_exp_f32 v{s+k}, v{s+k}", [s + k], [s + k], trans=True))
        def post(k):
            a = s + 2 * k
            if k == 0: F.append(V_(f"v_add_f32 v{x0}, v{a}, v{a+1}", [x0], [a, a + 1]))
            else:
                F.append(V_(f"v_add_f32 v{rl}, v{rl}, v{a}", [rl], [rl, a])); F.append(V_(f"v_add_f32 v{x0}, v{x0}, v{a+1}", [x0], [x0, a + 1]))
            if pack: F.append(cvt(Pr[t] + k, a))
        fma(0); fma(1)
        for k in range(16):
            ex(k)
            if k + 2 < 16: fma(k + 2)
            if k >= 3 and k % 2 == 1: post((k - 3) // 2)
        post(7)
        F.append(V_(f"v_add_f32 v{rl}, v{rl}, v{x0}", [rl], [rl, x0]))
        return F

    kbase = len(seg)
    for i in range(16): seg += qk(i)
    for k, t in enumerate(TORD):
        fl = [cvt(QF + 8 * t + j, ACC + 16 * t + 2 * j) for j in range(8)]
        at = p1_end - 16 + 2 * k + 1 + 3
        spread(seg, fl, at, at + 2)
    if stamps: seg[kbase + 15].fill.append(stamp); seg[kbase + 255].fill.append(stamp)
    vbase = len(seg)
    OFL = [C(2), C(6)]
    OFr = {t: OFL[t >> 1] + 8 * (t & 1) for t in range(4)}
    for t in range(4): OFr[4 + t] = Pr[t]
    for c in range(2):
        for s_ in range(8):
            st = V[c][s_]; first = len(seg)
            for t in range(4):
                tr = nta()
                for u in range(4):
                    ms = MS(QF + 16 * t, Pr[2 * s_ + (u >> 1)] + 4 * (u & 1), s_ == 0 and u == 0,
                            [("tr", tr, (16 * u + 8 * a) * 256) for a in range(2)])
                    if u == 0: ms.pre.append(xor_addr(tr, bV, st.slot | (t << 6)))
                    seg.append(ms)
            add_acq(seg[first], st)
            seg[-1].post.append(release(st))
    obase = len(seg)
    def win(t): return kbase + 16 * t
    for t in range(16):
        pass
    sched = {}
    for w_ in range(1, 24): sched[w_] = []
    for t in range(16):
        sched[t + 1] += tmax(t)
        if t % 4 == 3: sched[t + 1] += gmax(t // 4)
    ew = {0: 4, 1: 5, 2: 6, 3: 7, 4: 8, 5: 9, 6: 10, 7: 11, 8: 12, 9: 13, 10: 13, 11: 14}
    for t in range(12):
        sched[ew[t]] += texp(t)
    for t in range(12, 16): sched[16 + (t - 12)] += texp(t, pack=False)
    fin = [V_(f"v_mov_b32 v{x0}, v{rl}", [x0], [rl]),
           V_(f"v_permlane32_swap_b32 v{x0}, v{rl}", [x0, rl], [x0, rl], perm=True),
           V_(f"v_add_f32 v{rl}, v{rl}, v{x0}", [rl], [rl, x0]),
           V_(f"v_rcp_f32 v{rl}, v{rl}", [rl], [rl], trans=True),
           V_(f"v_mul_f32 v{al4}, v{al4}, v{rl}", [al4], [al4, rl])]
    for t in range(12, 16):
        s = C(Sc[t])
        for k in range(8): fin += [mul(s + 2 * k, rl), mul(s + 2 * k + 1, rl), cvt(Pr[t] + k, s + 2 * k)]
    sched[20] += fin[:len(fin) // 2]; sched[21] += fin[len(fin) // 2:]
    for w_, fl in sched.items():
        if fl: spread(seg, fl, win(w_) + 2, win(w_) + 16 - (3 if w_ == 21 else 0))
    for c in range(2):
        for g in range(1, 4):
            b0 = vbase + 128 * c + 32 * g
            for t in range(4):
                spread(seg, [mul(QF + 16 * t + k, AL[g]) for k in range(16)], b0 + 4 * t - 3, b0 + 4 * t)
    if stamps: seg[obase - 17].fill.append(stamp)
    OUT = [Pr[4], Pr[6], Pr[8], Pr[10]]
    tas = [(ta2, ta3), (ta0, ta1)]
    stg = 0; blocks = []
    for j in range(7):
        b0 = len(seg)
        for hf in range(2):
            st = O[j][hf]; first = len(seg); tp = tas[stg % 2]; stg += 1
            for u8 in range(8):
                for tau in range(2):
                    u = 8 * hf + u8
                    ms = MS(OUT[2 * (j % 2) + tau], OFr[u >> 1] + 4 * (u & 1), hf == 0 and u8 == 0,
                            [("tr", tp[tau], (16 * u8 + 8 * a) * 128) for a in range(2)])
                    if u8 == 0: ms.pre.append(xor_addr(tp[tau], bO, st.slot | (tau << 6)))
                    seg.append(ms)
            add_acq(seg[first], st)
            seg[-1].post.append(release(st))
        blocks.append(b0)
    for c in range(2):
        e = vbase + 128 * (c + 1) - 16
        for t in range(4):
            fl = [cvt(OFr[4 * c + t] + j, QF + 16 * t + 2 * j) for j in range(8)]
            at = e + 4 * t + 3 + 3
            spread(seg, fl, at, at + 3)
    stpol = cfg.get("stpol", "")
    def epi(j):
        F = []
        def so():
            if j == 0: A("s_lshl_b32 s47, s10, 12")
            else:
                A("s_add_u32 s47, s47, 4096"); A("s_cmp_eq_u32 s47, 28672"); A("s_cselect_b32 s47, 0, s47")
        F.append(so)
        for q in range(4):
            a = OUT[2 * (j % 2) + (q >> 1)] + 8 * (q & 1)
            F += [cvt(a + k, a + 2 * k) for k in range(4)]
            F.append(lambda a=a, q=q: E.store(f"buffer_store_dwordx4 v[{a}:{a+3}], v{vST}, s[24:27], s47 offen offset:{q*1024}{stpol}", range(a, a + 4), r=[vST]))
        return F
    for j in range(6):
        spread(seg, epi(j), blocks[j + 1] + 4, blocks[j + 1] + 28)
    run(seg)
    stamp()
    for f in epi(6): f()
    if stamps:
        A("s_waitcnt vmcnt(0)")
        stamp()
        A("s_cmp_eq_u32 s14, 0"); A("s_cbranch_scc0 L_done")
        A("s_mov_b32 s3, 0"); A("s_branch L_dump")
    A("s_endpgm")
    for tag, st in slow:
        E.raw(f"L_sl_{tag}:")
        A(f"ds_read_addtid_b32 v{vF} offset:{PRODOFF*(st.pw+1)}")
        A("s_add_u32 s61, s61, 1"); A("s_cmp_gt_u32 s61, 0x40000"); A(f"s_cbranch_scc1 L_ct_{tag}")
        A("s_waitcnt lgkmcnt(0)")
        A(f"v_cmp_lt_u32 vcc, {st.pi}, v{vF}")
        A(f"s_cbranch_vccz L_sl_{tag}")
        A(f"s_branch L_ct_{tag}")

    E.raw("L_prod:")
    A(f"s_setprio {cfg.get('prio', 3)}")
    A("v_lshrrev_b32 v3, 5, v2")
    A("v_and_b32 v4, 31, v2")
    A("v_lshrrev_b32 v5, 3, v2")
    A("v_and_b32 v6, 7, v2")
    A("v_mul_u32_u24 v7, 896, v5")
    A("v_lshrrev_b32 v8, 1, v5")
    VX = [16, 17]; VW = [18, 19]; VV = 20; VO = 22; VK = list(range(24, 32)); VP = 32; VPA = 33; VSA = 34; VS = 36
    for j in range(2):
        A(f"v_add_u32 v9, {4*j}, v8"); A("v_and_b32 v9, 7, v9"); A("v_xor_b32 v9, v9, v6"); A("v_lshlrev_b32 v9, 4, v9")
        A(f"v_add_u32 v{VX[j]}, v7, v9")
        A(f"v_add_u32 v9, {2*j}, v3"); A("v_lshlrev_b32 v9, 2, v9"); A("v_xor_b32 v9, v9, v4"); A("v_lshlrev_b32 v9, 4, v9")
        A("v_lshlrev_b32 v10, 13, v3"); A(f"v_add_u32 v{VW[j]}, v9, v10")
    A("v_and_b32 v9, 1, v8"); A("v_lshlrev_b32 v9, 2, v9"); A("v_xor_b32 v9, v9, v6"); A("v_lshlrev_b32 v9, 4, v9")
    A(f"v_add_u32 v{VO}, v7, v9")
    A("v_and_b32 v9, 15, v2"); A("v_lshlrev_b32 v10, 2, v8"); A("v_xor_b32 v9, v9, v10"); A("v_lshlrev_b32 v9, 4, v9")
    A("v_lshlrev_b32 v10, 9, v8"); A(f"v_add_u32 v{VV}, v9, v10")
    A("v_lshlrev_b32 v10, 9, v3")
    for i in range(8):
        A(f"v_add_u32 v9, {2*i}, v3"); A("v_xor_b32 v9, v9, v4"); A("v_lshlrev_b32 v9, 4, v9"); A(f"v_add_u32 v{VK[i]}, v9, v10")
    A(f"v_and_b32 v{VPA}, 3, v2"); A(f"v_lshlrev_b32 v{VPA}, 8, v{VPA}")
    A(f"v_lshlrev_b32 v{VSA}, 4, v2")
    A("s_mov_b32 s60, 0")
    A("s_waitcnt lgkmcnt(0)")
    srds(["x", "wq", "k", "v", "wo"])
    for base, rs in ((36, 9), (48, 10)):
        for g in range(7):
            if g == 0: A(f"s_lshl_b32 s{base}, s{rs}, 7")
            else:
                A(f"s_add_u32 s{base+g}, s{base+g-1}, 128"); A(f"s_cmp_eq_u32 s{base+g}, 896"); A(f"s_cselect_b32 s{base+g}, 0, s{base+g}")
    for p_ in range(1, NP):
        A(f"s_cmp_eq_u32 s14, {4+p_}"); A(f"s_cbranch_scc1 L_prod{p_}")
    Wn = cfg.get("W", 32); ws_ = cfg.get("wstep", 2)
    ntkv = " nt" if cfg.get("ntkv", True) else ""
    ntw = " nt" if cfg.get("ntw", False) else ""
    pslow = []
    def signal(p_, n, gidx=None):
        if gidx is not None and cfg.get("p64") and gidx + 1 - cfg.get("p64o", 0) in range(1, 64):
            A(f"{TM} s[62:63]"); A("s_waitcnt lgkmcnt(0)"); A(f"v_writelane_b32 v40, s62, {gidx + 1 - cfg.get('p64o', 0)}")
        A(f"s_max_u32 s60, s60, {n}")
        for k in range(4): A(f"v_mov_b32 v{VS+k}, s60")
        A(f"ds_write_b128 v{VSA}, v[{VS}:{VS+3}] offset:{PRODOFF*(p_+1)}")
    for p_ in range(NP):
        if p_: E.raw(f"L_prod{p_}:")
        if cfg.get("p64"): A("v_mov_b32 v40, 0")
        mine = iss[p_::NP]
        issued = 0; ends = []; bar = False
        for si, st in enumerate(mine):
            if st.need > 0:
                assert bar
                A("s_waitcnt lgkmcnt(0)")
                A(f"v_cmp_gt_u32 vcc, {st.need}, v{VP}")
                if not cfg.get("free"): A(f"s_cbranch_vccnz L_ps_{st.ii}")
                E.raw(f"L_pc_{st.ii}:")
                pslow.append((p_, si, st))
            for p in range(16):
                off = (p % 4) * 1024
                if not bar and (issued >= Wn - ws_ or (p == 8 and si + 1 < len(mine) and mine[si + 1].need > 0)):
                    A("s_barrier"); bar = True
                    if cfg.get("noprod"): A("s_endpgm")
                if p == 8 and si + 1 < len(mine) and mine[si + 1].need > 0:
                    A(f"ds_read_b32 v{VP}, v{VPA}")
                if issued >= Wn and (p % ws_ == 0):
                    A(f"s_waitcnt vmcnt({Wn - ws_})")
                    done = issued - (Wn - ws_)
                    sig = None
                    while ends and ends[0][0] <= done: sig = ends.pop(0)[1]
                    if sig is not None: signal(p_, sig.pi + 1, sig.ii)
                if p % 4 == 0: A(f"s_mov_b32 m0, {st.slot + (p // 4) * 4096}")
                if st.kind == "K":
                    if p % 4 == 0: A(f"s_mov_b32 s44, {st.a * 16384 + (p // 4) * 4096}")
                    v = VK[p % 8]; srd = "s[20:23]"; pol = ntkv
                elif st.kind == "V":
                    A(f"s_mov_b32 s44, {(64 * st.b + 4 * p) * 512 + 256 * st.a - off}"); v = VV; srd = "s[24:27]"; pol = ntkv
                elif st.kind == "W":
                    if p == 0: A(f"s_lshl_b32 s43, s{36+st.a}, 12")
                    A(f"s_add_u32 s44, s43, {(32 * st.b + 2 * p) * 8192 - off}"); v = VW[p % 2]; srd = "s[28:31]"; pol = ntw
                elif st.kind == "X":
                    A(f"s_add_u32 s44, s{36+st.a}, {8 * p * 896 - off}"); v = VX[p % 2]; srd = "s[16:19]"; pol = ntw
                else:
                    A(f"s_add_u32 s44, s{48+st.a}, {(128 * st.b + 8 * p) * 896 - off}"); v = VO; srd = "s[32:35]"; pol = ntw
                A(f"buffer_load_dwordx4 v{v}, {srd}, s44 offen offset:{off}{pol} lds")
                issued += 1
            ends.append((issued, st))
        assert bar
        while ends:
            e, st = ends.pop(0)
            A(f"s_waitcnt vmcnt({issued - e})"); signal(p_, st.pi + 1, st.ii)
        if cfg.get("p64"):
            if p_ == 0: A("v_writelane_b32 v40, s64, 0")
            A("s_lshl_b32 s8, s2, 8"); A(f"s_add_u32 s8, s8, {201<<20}")
            A("s_add_u32 s62, s12, s8"); A("s_addc_u32 s63, s13, 0")
            A("v_lshlrev_b32 v41, 2, v2")
            A("v_cmp_ne_u32 vcc, 0, v40"); A("s_and_b64 exec, exec, vcc"); A("s_cbranch_execz L_done")
            A("global_store_dword v41, v40, s[62:63]")
        A("s_endpgm")
    if stamps:
        E.raw("L_dump:")
        A("s_waitcnt lgkmcnt(0)")
        A("s_lshl_b32 s8, s2, 7"); A(f"s_add_u32 s8, s8, {200<<20}"); A("s_add_u32 s8, s8, s3")
        A("s_add_u32 s12, s12, s8"); A("s_addc_u32 s13, s13, 0")
        for k in range(16): A(f"v_mov_b32 v{8+k}, s{64+k}")
        A("v_mov_b32 v4, 0")
        A("s_mov_b64 exec, 1")
        for k in range(4): A(f"global_store_dwordx4 v4, v[{8+4*k}:{11+4*k}], s[12:13] offset:{16*k}")
    E.raw("L_done:")
    A("s_endpgm")
    for p_, si, st in pslow:
        E.raw(f"L_ps_{st.ii}:")
        A(f"ds_read_b32 v{VP}, v{VPA}")
        A("s_waitcnt lgkmcnt(0)")
        A(f"v_cmp_gt_u32 vcc, {st.need}, v{VP}")
        A(f"s_cbranch_vccz L_pc_{st.ii}")
        if si >= 2 and Wn > 16:
            A("s_waitcnt vmcnt(16)"); signal(p_, si - 1)
        A("s_waitcnt vmcnt(0)")
        signal(p_, si)
        E.raw(f"L_pl_{st.ii}:")
        A(f"ds_read_b32 v{VP}, v{VPA}")
        A("s_add_u32 s61, s61, 1"); A("s_cmp_gt_u32 s61, 0x40000"); A(f"s_cbranch_scc1 L_pc_{st.ii}")
        A("s_waitcnt lgkmcnt(0)")
        A(f"v_cmp_gt_u32 vcc, {st.need}, v{VP}")
        A(f"s_cbranch_vccnz L_pl_{st.ii}")
        A(f"s_branch L_pc_{st.ii}")

    E.raw(".globl red_kernel"); E.raw(".p2align 8"); E.raw(".type red_kernel,@function"); E.raw("red_kernel:")
    A("s_cmp_ge_u32 s2, 448"); A("s_cbranch_scc1 L_rdone")
    A("s_load_dwordx2 s[4:5], s[0:1], 96")
    A("s_load_dwordx2 s[8:9], s[0:1], 80")
    A("s_and_b32 s12, s2, 15"); A("s_lshr_b32 s13, s2, 4"); A("s_and_b32 s14, s13, 3"); A("s_lshr_b32 s15, s13, 2")
    A("v_and_b32 v1, 7, v0")
    A("v_bfe_u32 v2, v0, 3, 3")
    A("v_lshrrev_b32 v3, 6, v0")
    A("v_lshlrev_b32 v3, 3, v3"); A("v_add_u32 v3, v3, v1")
    A("v_lshlrev_b32 v4, 9, v2"); A("v_lshlrev_b32 v5, 4, v3"); A("v_add_u32 v4, v4, v5")
    A("v_mul_u32_u24 v5, 1792, v3"); A("v_lshlrev_b32 v6, 4, v2"); A("v_add_u32 v5, v5, v6")
    A(f"s_mul_i32 s16, s12, {16*114688}"); A("s_mul_i32 s17, s14, 28672"); A("s_lshl_b32 s18, s15, 12")
    A("s_add_u32 s17, s17, s18")
    A("s_and_b32 s19, s12, 7"); A("s_lshl_b32 s19, s19, 2"); A("s_add_u32 s19, s19, s14"); A(f"s_mul_i32 s19, s19, {32*1792}")
    A("s_lshr_b32 s20, s12, 3"); A("s_mul_i32 s20, s20, 896"); A("s_add_u32 s19, s19, s20")
    A("s_lshl_b32 s20, s15, 7"); A("s_add_u32 s19, s19, s20")
    A("s_waitcnt lgkmcnt(0)")
    A("s_add_u32 s4, s4, s16"); A("s_addc_u32 s5, s5, 0"); A(f"s_mov_b32 s6, {16*114688}"); A("s_mov_b32 s7, 0x20000")
    A(f"s_mov_b32 s10, {8*128*896*2}"); A("s_mov_b32 s11, 0x20000")
    rpol = cfg.get("rpol", "")
    for h in range(16):
        A(f"buffer_load_dwordx4 v[{16+4*h}:{19+4*h}], v4, s[4:7], s17 offen{rpol}")
        if h < 15: A("s_add_u32 s17, s17, 114688")
    A("s_mov_b32 s21, 0xffff0000")
    for h in range(16):
        A(f"s_waitcnt vmcnt({15-h})")
        for k in range(4):
            r = 16 + 4 * h + k
            if h == 0:
                A(f"v_lshlrev_b32 v{8+2*k}, 16, v{r}"); A(f"v_and_b32 v{9+2*k}, s21, v{r}")
            else:
                A(f"v_lshlrev_b32 v6, 16, v{r}"); A(f"v_and_b32 v7, s21, v{r}")
                A(f"v_add_f32 v{8+2*k}, v{8+2*k}, v6"); A(f"v_add_f32 v{9+2*k}, v{9+2*k}, v7")
    for k in range(4): A(f"v_cvt_pk_bf16_f32 v{16+k}, v{8+2*k}, v{9+2*k}")
    A("buffer_store_dwordx4 v[16:19], v5, s[8:11], s19 offen")
    E.raw("L_rdone:")
    A("s_endpgm")

    out += E.L
    out.append('.section .rodata,"a"')
    for kname, vg in (("attn_kernel", 256), ("red_kernel", 80)):
        out.append(".p2align 6"); out.append(f".amdhsa_kernel {kname}")
        out.append(f"  .amdhsa_next_free_vgpr {vg}"); out.append("  .amdhsa_next_free_sgpr 96"); out.append(f"  .amdhsa_accum_offset {vg}")
        out.append("  .amdhsa_group_segment_fixed_size 0"); out.append("  .amdhsa_kernarg_size 104"); out.append("  .amdhsa_user_sgpr_count 2")
        out.append("  .amdhsa_user_sgpr_kernarg_segment_ptr 1"); out.append("  .amdhsa_system_sgpr_workgroup_id_x 1"); out.append(".end_amdhsa_kernel")
    if cfg.get("v"): sys.stderr.write(f"instrs {E.n} nops {E.nops} issue order: {iss}\n")
    return "\n".join(out) + "\n"

BASE = dict(ins={4: 2, 10: 2}, oins={}, W=16, D=3, NP=2, cpf=3)
if __name__ == "__main__":
    cfg = dict(BASE)
    path = sys.argv[1]
    for a in sys.argv[2:]:
        k, v = a.split("=", 1)
        cfg[k] = eval(v)
    open(path, "w").write(gen(cfg))
```
